```python
import torch

def _softmax(x, axis=-1):
    return torch.softmax(x, dim=axis)
def _gelu(x):
    return torch.nn.functional.gelu(x, approximate="tanh")
def _silu(x):
    return torch.nn.functional.silu(x)
def _sigmoid(x):
    return torch.sigmoid(x)
def _layernorm(x, axis=-1, eps=1e-5):
    m = x.mean(dim=axis, keepdim=True)
    v = x.var(dim=axis, keepdim=True, unbiased=False)
    return (x - m) / torch.sqrt(v + eps)
def _scatter_add(tgt, idx, src, axis=0):
    return tgt.clone().index_add_(axis, idx, src)
def _segment_sum(src, seg, n):
    out = torch.zeros((n,) + src.shape[1:], dtype=src.dtype)
    return out.index_add_(0, seg, src)
def _pad(x, pw):
    flat = tuple(v for pair in reversed(pw) for v in pair)
    return torch.nn.functional.pad(x, flat)

kernel_name = 'sequential_preLN__gqa_block_cached__mixer_channel_mlp__decode'

def setup_inputs():

    _w = (lambda a: (lambda t: t.to(torch.bfloat16) if t.is_floating_point() else t)(torch.as_tensor(a)))
    def _A_setup():
        B, Sq, D = 1, 1, 512
        Hq, Hkv, Sk, Dh = 32, 8, 65536, 128
        assert Hq % Hkv == 0, (Hq, Hkv)
        return {
            "x": _w((lambda *s: torch.randn(*s, dtype=torch.bfloat16) * 0.05)(B, Sq, D)),
            "k_cache": _w((lambda *s: torch.randn(*s, dtype=torch.bfloat16) * 3.2)(B, Hkv, Sk, Dh)),
            "v_cache": _w((lambda *s: torch.randn(*s, dtype=torch.bfloat16) * 0.4)(B, Hkv, Sk, Dh)),
            "wq": _w((lambda *s: torch.randn(*s, dtype=torch.bfloat16) * 3.2)(D, Hq * Dh) * (D ** -0.5)),
            "wo": _w((lambda *s: torch.randn(*s, dtype=torch.bfloat16) * 0.4)(Hq * Dh, D) * ((Hq * Dh) ** -0.5)),
        }
    _A_in = _A_setup()

    def _B_setup():
        B, S, D, F = 1, 1, 512, 1792
        return {
            "x": _w((lambda *s: torch.randn(*s, dtype=torch.bfloat16) * 0.05)(B, S, D)),
            "w1": _w((lambda *s: torch.randn(*s, dtype=torch.bfloat16) * 3.2)(D, F) * (D ** -0.5)),
            "b1": _w((lambda *s: torch.randn(*s, dtype=torch.bfloat16) * 3.2)(F)),
            "w2": _w((lambda *s: torch.randn(*s, dtype=torch.bfloat16) * 0.4)(F, D) * (F ** -0.5)),
            "b2": _w((lambda *s: torch.randn(*s, dtype=torch.bfloat16) * 0.8)(D)),
        }
    _B_in = _B_setup()

    return {
        "A_x": _A_in["x"],
        "A_k_cache": _A_in["k_cache"],
        "A_v_cache": _A_in["v_cache"],
        "A_wq": _A_in["wq"],
        "A_wo": _A_in["wo"],
        "B_x": _B_in["x"],
        "B_w1": _B_in["w1"],
        "B_b1": _B_in["b1"],
        "B_w2": _B_in["w2"],
        "B_b2": _B_in["b2"],
    }

def reference(A_x, A_k_cache, A_v_cache, A_wq, A_wo, B_x, B_w1, B_b1, B_w2, B_b2):
    def _A_ref(x, k_cache, v_cache, wq, wo):
        B, Sq, D = x.shape
        Hq, Dh = 32, 128
        Hkv = k_cache.shape[1]
        rep = Hq // Hkv
        q = (lambda x, *d: x.permute(*d))((x @ wq).reshape(B, Sq, Hq, Dh), 0, 2, 1, 3)
        k = (lambda x, n, axis: torch.repeat_interleave(x, n, dim=axis))(k_cache, rep, axis=1)
        v = (lambda x, n, axis: torch.repeat_interleave(x, n, dim=axis))(v_cache, rep, axis=1)
        scores = torch.einsum("bhqd,bhkd->bhqk", q, k) * (Dh ** -0.5)
        p = _softmax(scores, axis=-1)
        o = torch.einsum("bhqk,bhkd->bhqd", p, v)
        return (lambda x, *d: x.permute(*d))(o, 0, 2, 1, 3).reshape(B, Sq, Hq * Dh) @ wo

    def _B_ref(x, w1, b1, w2, b2):
        y = _layernorm(x, axis=-1)
        h = _gelu(torch.einsum("bsd,df->bsf", y, w1) + b1)
        return torch.einsum("bsf,fd->bsd", h, w2) + b2

    x = A_x
    h = x + _A_ref(_layernorm(x, axis=-1), A_k_cache, A_v_cache, A_wq, A_wo)
    h2 = h + _B_ref(_layernorm(h, axis=-1), B_w1, B_b1, B_w2, B_b2)
    return h2
```

```python
import re
TRANS = ("v_exp_f32", "v_log_f32", "v_rcp_f32", "v_rsq_f32", "v_sqrt_f32", "v_sin_f32", "v_cos_f32")
def regs(op):
    op = op.strip()
    op = re.sub(r"^-|^\||\|$", "", op)
    op = op.replace("neg(", "").replace("abs(", "").replace(")", "")
    m = re.fullmatch(r"v(\d+)", op)
    if m: return {int(m.group(1))}, set()
    m = re.fullmatch(r"v\[(\d+):(\d+)\]", op)
    if m: return set(range(int(m.group(1)), int(m.group(2)) + 1)), set()
    m = re.fullmatch(r"s(\d+)", op)
    if m: return set(), {int(m.group(1))}
    m = re.fullmatch(r"s\[(\d+):(\d+)\]", op)
    if m: return set(), set(range(int(m.group(1)), int(m.group(2)) + 1))
    if op == "vcc": return set(), {106, 107}
    if op == "vcc_lo": return set(), {106}
    if op == "vcc_hi": return set(), {107}
    if op == "exec": return set(), {126, 127}
    return set(), set()
class Rec:
    pass
def parse(text):
    t = text.split(";")[0].strip()
    parts = t.split(None, 1)
    mn = parts[0]
    rest = parts[1] if len(parts) > 1 else ""
    ops = [o.strip() for o in rest.split(",")] if rest else []
    mods = ""
    if ops:
        sp = ops[-1].split(None, 1)
    ops2 = []
    depth = 0; cur = ""
    for ch in rest:
        if ch == "[": depth += 1
        if ch == "]": depth -= 1
        if ch == "," and depth == 0:
            ops2.append(cur.strip()); cur = ""
        else:
            cur += ch
    if cur.strip(): ops2.append(cur.strip())
    if ops2:
        sp = ops2[-1].split(None, 1)
        ops2[-1] = sp[0]
        mods = sp[1] if len(sp) > 1 else ""
    r = Rec(); r.mn = mn; r.text = t; r.mods = mods
    r.vw = set(); r.vr = set(); r.sw = set(); r.sr = set(); r.srcc = set(); r.ab = set()
    r.kind = "other"; r.states = 1; r.wide = set(); r.lanesel = set()
    base = re.sub(r"_(e32|e64|dpp|sdwa)$", "", mn)
    r.base = base
    def rd(o):
        v, s = regs(o); r.vr |= v; r.sr |= s
    def wr(o):
        v, s = regs(o); r.vw |= v; r.sw |= s
    if mn == "s_nop":
        r.states = int(ops2[0], 0) + 1
    elif mn.startswith("v_mfma"):
        r.kind = "mfma"; wr(ops2[0]); rd(ops2[1]); rd(ops2[2]); rd(ops2[3])
        r.ab = regs(ops2[1])[0] | regs(ops2[2])[0]; r.srcc = regs(ops2[3])[0]
    elif mn.startswith("v_"):
        r.kind = "valu"
        r.dpp = ("row_" in mods or "quad_perm" in mods or mn.endswith("_dpp") or "wave_" in mods)
        r.trans = base in TRANS
        r.perm = base.startswith("v_permlane")
        r.rl = base in ("v_readlane_b32", "v_readfirstlane_b32")
        wr(ops2[0])
        srcs = ops2[1:]
        if base in ("v_add_co_u32", "v_sub_co_u32", "v_addc_co_u32", "v_subb_co_u32", "v_div_scale_f32"):
            wr(ops2[1]); srcs = ops2[2:]
        for o in srcs: rd(o)
        if r.perm:
            wr(ops2[1]); rd(ops2[0])
        if base.startswith("v_fmac") or base.startswith("v_pk_fmac") or r.dpp or base.startswith("v_writelane") or base.startswith("v_dot2c"):
            rd(ops2[0])
        if base == "v_cndmask_b32" and len(ops2) == 3:
            r.sr |= {106, 107}
        if base in ("v_readlane_b32", "v_writelane_b32"):
            r.lanesel = regs(ops2[2])[1]
        if base.startswith("v_cmpx"):
            r.sw |= {126, 127}
    elif mn.startswith("buffer_load") or mn.startswith("global_load") or mn.startswith("ds_read") or mn.startswith("ds_bpermute") or mn.startswith("ds_add_rtn"):
        r.kind = "mem";
        if " lds" in (" " + mods) or "_lds_" in mn:
            for o in ops2: rd(o)
        else:
            wr(ops2[0])
            for o in ops2[1:]: rd(o)
    elif mn.startswith("buffer_store") or mn.startswith("global_store") or mn.startswith("ds_write") or mn.startswith("buffer_atomic") or mn.startswith("global_atomic") or mn.startswith("ds_add"):
        r.kind = "mem"
        for o in ops2: rd(o)
        if "atomic" in mn and "sc0" in mods:
            wr(ops2[0])
        if mn.endswith("x4") or mn.endswith("x3"):
            r.wide = regs(ops2[0] if mn.startswith("buffer") else ops2[1])[0]
    elif mn.startswith("s_"):
        r.kind = "salu"
        if ops2 and not mn.startswith("s_cmp") and not mn.startswith("s_cbranch") and not mn.startswith("s_waitcnt") and not mn.startswith("s_bitcmp"):
            wr(ops2[0])
    r.vmem = r.kind == "mem" and not mn.startswith("ds_")
    return r
def need(p, c):
    n = 0
    if p.kind == "valu":
        if c.kind == "valu":
            if p.vw & c.vr:
                if c.dpp or c.perm: n = max(n, 2)
                if c.rl: n = max(n, 1)
                if p.trans and not c.trans: n = max(n, 1)
            if p.sw & c.sr: n = max(n, 2)
            if p.sw & c.lanesel: n = max(n, 4)
            if p.sw & {126, 127}:
                if c.dpp: n = max(n, 5)
                if c.rl or c.perm: n = max(n, 4)
        if c.kind == "mfma":
            if p.vw & c.vr: n = max(n, 2)
            if p.sw & {126, 127}: n = max(n, 4)
        if c.kind == "mem" and (p.sw & c.sr): n = max(n, 5)
        if c.kind == "mem" and p.trans and (p.vw & c.vr): n = max(n, 1)
    if p.kind == "mfma":
        if c.kind == "valu":
            if p.vw & (c.vr | c.vw): n = max(n, 8)
            if p.srcc & c.vw: n = max(n, 3)
        if c.kind == "mem" and (p.vw & (c.vr | c.vw)): n = max(n, 8)
        if c.kind == "mfma":
            if p.vw & c.ab: n = max(n, 8)
            if (p.vw & c.srcc) and p.vw != c.srcc: n = max(n, 6)
            if (p.vw & c.vw) and not (p.vw & c.srcc): n = max(n, 8)
    if p.kind == "mem" and p.wide and (p.wide & c.vw): n = max(n, 2)
    return n
class Asm:
    def __init__(self):
        self.L = []; self.hist = []
        self.snap = {}; self.after = {}; self.watch = []
        self.maxv = 0; self.maxs = 0
    def raw(self, t): self.L.append(t)
    def _age(self, k):
        self.hist = [[r, a + k] for r, a in self.hist if a + k < 12]
    def e(self, text):
        for t in text.strip().split("\n"):
            t = t.strip()
            if not t or t.startswith(";"):
                continue
            self._e(t)
    def _e(self, t):
        if t.endswith(":"):
            return self.label(t[:-1])
        r = parse(t)
        pad = 0
        for p, a in self.hist:
            pad = max(pad, need(p, r) - a)
        if pad > 0:
            self.L.append(f"    s_nop {pad-1}")
            n = parse(f"s_nop {pad-1}")
            self._age(pad); self._note(n)
        self.L.append("    " + t)
        for v in r.vw | r.vr: self.maxv = max(self.maxv, v)
        for s in r.sw | r.sr:
            if s < 102: self.maxs = max(self.maxs, s)
        self._age(r.states)
        self.hist.append([r, 0])
        self._note(r)
        if r.mn.startswith("s_cbranch") or r.mn == "s_branch":
            lab = t.split()[1]
            if lab in self.after:
                h = [[p, a] for p, a in self.hist]
                for c in self.after[lab]:
                    for p, a in h:
                        assert need(p, c) - a <= 0, f"hazard across back-edge {lab}: {p.text} -> {c.text}"
                    h = [[p, a + c.states] for p, a in h]
            else:
                self.snap.setdefault(lab, []).extend([[p, a] for p, a in self.hist])
            if r.mn == "s_branch": self.hist = []
        if r.mn == "s_endpgm": self.hist = []
    def _note(self, r):
        for lab in list(self.watch):
            self.after[lab].append(r)
            if len(self.after[lab]) >= 12: self.watch.remove(lab)
    def label(self, lab):
        self.L.append(lab + ":")
        self.hist = self.hist + self.snap.pop(lab, [])
        self.after[lab] = []; self.watch.append(lab)
    def text(self): return "\n".join(self.L) + "\n"
```

```python
import sys, struct
from asmlib import Asm
KN = "sequential_preLN__gqa_block_cached__mixer_channel_mlp__decode_kernel"
def f2u(x): return struct.unpack("<I", struct.pack("<f", x))[0]
LOG2E = 1.4426950408889634
WS_Q, WS_HD, WS_H2, WS_H3, WS_H1 = 0x0, 0x4000, 0x8000, 0x10000, 0x40000
OOB = 0x30000000
L_Q, L_O, L_ML, L_OB, L_H, L_Y, L_T, L_HH, L_XN, L_STG = 0, 1024, 9216, 9472, 10240, 11264, 15360, 15872, 16384, 20480
LDS_BYTES = L_STG + 4 * 16384
HEADER = open("sequential_preLN__gqa_block_cached__mixer_channel_mlp__decode.s.ref").read().split("; Override launch")[0]

def gen(D=5, stamps=False, wq_nt=False, early_w=True, hs=" sc1", spin=1 << 16):
    a = Asm(); e = a.e
    a.raw(HEADER.rstrip())
    a.raw(f"; @launch grid=(256,1,1) block=(512,1,1) lds={LDS_BYTES}")
    a.raw('.amdgcn_target "amdgcn-amd-amdhsa--gfx950"\n.text')
    a.raw(f".globl {KN}\n.p2align 8\n.type {KN},@function\n{KN}:")
    def stamp(i):
        if stamps:
            e(f"s_memrealtime s[{80+2*i}:{81+2*i}]")
    def srd(base, ptr, size):
        e(f"s_mov_b32 s{base}, s{ptr}\ns_and_b32 s{base+1}, s{ptr+1}, 0xffff\ns_mov_b32 s{base+2}, {size:#x}\ns_mov_b32 s{base+3}, 0x00020000")
    def xrow(op, x, t):
        e(f"v_mov_b32 v{t}, v{x}\nv_permlane16_swap_b32 v{t}, v{x}\n{op} v{x}, v{x}, v{t}")
        e(f"v_mov_b32 v{t}, v{x}\nv_permlane32_swap_b32 v{t}, v{x}\n{op} v{x}, v{x}, v{t}")
    def allsum(x, t):
        for r in (8, 4, 2, 1):
            e(f"v_add_f32_dpp v{x}, v{x}, v{x} row_ror:{r} row_mask:0xf bank_mask:0xf")
        xrow("v_add_f32", x, t)
    def bf(d, s):
        e(f"v_cvt_pk_bf16_f32 v{d}, 0, v{s}")
    def unpack8(d, s):
        for i in range(4):
            e(f"v_lshlrev_b32 v{d+2*i}, 16, v{s+i}\nv_and_b32 v{d+2*i+1}, 0xffff0000, v{s+i}")
    def layernorm(x, t):
        e(f"v_pk_add_f32 v[{t}:{t+1}], v[{x}:{x+1}], v[{x+2}:{x+3}]")
        e(f"v_pk_add_f32 v[{t+2}:{t+3}], v[{x+4}:{x+5}], v[{x+6}:{x+7}]")
        e(f"v_pk_add_f32 v[{t}:{t+1}], v[{t}:{t+1}], v[{t+2}:{t+3}]")
        e(f"v_add_f32 v{t}, v{t}, v{t+1}")
        allsum(t, t + 1)
        e(f"v_mul_f32 v{t}, {f2u(1/512):#x}, v{t}")
        for i in range(4):
            e(f"v_pk_add_f32 v[{t+4+2*i}:{t+5+2*i}], v[{x+2*i}:{x+1+2*i}], v[{t}:{t+1}] op_sel_hi:[1,0] neg_lo:[0,1] neg_hi:[0,1]")
        e(f"v_pk_mul_f32 v[{t+2}:{t+3}], v[{t+4}:{t+5}], v[{t+4}:{t+5}]")
        for i in range(1, 4):
            e(f"v_pk_fma_f32 v[{t+2}:{t+3}], v[{t+4+2*i}:{t+5+2*i}], v[{t+4+2*i}:{t+5+2*i}], v[{t+2}:{t+3}]")
        e(f"v_add_f32 v{t+2}, v{t+2}, v{t+3}")
        bf(t, t)
        allsum(t + 2, t + 3)
        for i in range(4):
            e(f"v_pk_add_f32 v[{x+2*i}:{x+1+2*i}], v[{x+2*i}:{x+1+2*i}], v[{t}:{t+1}] op_sel_hi:[1,0] neg_lo:[0,1] neg_hi:[0,1]")
        e(f"v_mul_f32 v{t+2}, {f2u(1/512):#x}, v{t+2}")
        bf(t + 2, t + 2)
        e(f"v_add_f32 v{t+2}, {f2u(1e-5):#x}, v{t+2}")
        bf(t + 2, t + 2)
        e(f"v_sqrt_f32 v{t+2}, v{t+2}")
        for i in range(4): bf(x + i, x + i)
        bf(t + 2, t + 2)
        e(f"v_rcp_f32 v{t+2}, v{t+2}")
        for i in range(4, 8): bf(x + i, x + i)
        for i in range(4):
            e(f"v_pk_mul_f32 v[{x+2*i}:{x+1+2*i}], v[{x+2*i}:{x+1+2*i}], v[{t+2}:{t+3}] op_sel_hi:[1,0]")
    def anysent(regs, t):
        rs = list(regs)
        e(f"v_max3_u32 v{t}, v{rs[0]}, v{rs[1]}, v{rs[2]}")
        rs = rs[3:]
        while len(rs) >= 2:
            e(f"v_max3_u32 v{t}, v{t}, v{rs[0]}, v{rs[1]}"); rs = rs[2:]
        if rs: e(f"v_max_u32 v{t}, v{t}, v{rs[0]}")
        e(f"v_cmp_eq_u32 vcc, -1, v{t}")
    def poll(name, issue, check):
        e(f"s_mov_b32 s79, {spin}")
        e(f"{name}:")
        issue()
        e("s_waitcnt vmcnt(0)")
        check()
        e(f"s_cbranch_vccz {name}_ok")
        e(f"s_sub_u32 s79, s79, 1\ns_cmp_lg_u32 s79, 0\ns_cbranch_scc1 {name}")
        e(f"{name}_ok:")

    e("s_cmp_ge_u32 s2, 256\ns_cbranch_scc1 L_end")
    e("s_load_dwordx16 s[4:19], s[0:1], 0\ns_load_dwordx8 s[20:27], s[0:1], 64\ns_load_dwordx2 s[28:29], s[0:1], 96")
    stamp(0)
    if stamps:
        for i in range(82, 92): e(f"s_mov_b32 s{i}, 0")
    e("v_lshrrev_b32 v2, 6, v0\nv_and_b32 v1, 63, v0")
    e("v_readfirstlane_b32 s60, v2")
    e("s_lshr_b32 s61, s2, 5\ns_and_b32 s62, s2, 31")
    e("s_cmp_lt_u32 s60, 4\ns_cbranch_scc1 L_service")
    VK, VV, VM, MA, MB = 2, 3, 4, 5, 10
    VML, VL = 6, 8
    U, A_, S, T, O, Q, WIN = 11, 12, 16, 20, 24, 32, 48
    BUF = 68
    e("""s_mul_i32 s63, s62, 124
s_mov_b32 s64, 31
s_cmp_ge_u32 s62, 15
s_cbranch_scc0 L_rng
s_mul_i32 s63, s62, 132
s_sub_u32 s63, s63, 120
s_mov_b32 s64, 33
s_cmp_ge_u32 s62, 30
s_cbranch_scc0 L_rng
s_lshl_b32 s63, s62, 7
s_mov_b32 s64, 32
L_rng:""")
    e("s_add_u32 s63, s63, s60\ns_sub_u32 s63, s63, 4\ns_lshl_b32 s63, s63, 12")
    e("s_lshl_b32 s65, s61, 24\ns_add_u32 s63, s63, s65")
    e(f"s_sub_u32 s65, s64, {D}")
    e(f"""v_and_b32 v{VK}, 3, v1
v_lshlrev_b32 v{VK}, 10, v{VK}
v_bfe_u32 v{U}, v1, 2, 2
v_lshl_add_u32 v{VK}, v{U}, 8, v{VK}
v_lshrrev_b32 v{U}, 4, v1
v_lshl_add_u32 v{VK}, v{U}, 4, v{VK}
v_lshlrev_b32 v{VV}, 4, v1""")
    e("s_waitcnt lgkmcnt(0)")
    srd(32, 6, 0x8000000); srd(36, 8, 0x8000000)
    def issueK(d):
        b = BUF + 32 * d
        for j in range(4):
            e(f"buffer_load_dwordx4 v[{b+4*j}:{b+4*j+3}], v{VK}, s[32:35], s66 offen offset:{64*j} nt")
    def issueV(d):
        b = BUF + 32 * d + 16
        for j in range(4):
            e(f"buffer_load_dwordx4 v[{b+4*j}:{b+4*j+3}], v{VV}, s[36:39], s66 offen offset:{1024*j} nt")
    for d in range(D):
        e("s_mov_b32 s66, s63")
        issueK(d); issueV(d)
        e("s_add_u32 s63, s63, 16384")
    e(f"s_mov_b32 s68, {f2u(128**-0.5):#x}\ns_mov_b32 s69, s68\ns_mov_b32 s70, {f2u(LOG2E):#x}\ns_mov_b32 s71, s70")
    e(f"v_mov_b32 v{VM}, 0xff800000\nv_mov_b32 v{VML}, 0xff800000\nv_mov_b32 v{VL}, 0\nv_mov_b32 v{VL+1}, 0")
    for i in range(8): e(f"v_mov_b32 v{O+i}, 0")
    for i in range(18): e(f"v_mov_b32 v{WIN+i}, 0")
    e(f"""v_and_b32 v{U}, 1, v1
v_lshlrev_b32 v{U}, 4, v{U}
v_mov_b32 v{A_}, 0xffff
v_lshlrev_b32 v{A_}, v{U}, v{A_}
v_and_b32 v{U}, 2, v1
v_cmp_eq_u32 vcc, 0, v{U}
v_cndmask_b32 v{MA}, 0, v{A_}, vcc
v_cndmask_b32 v{MB}, v{A_}, 0, vcc""".replace(f"v_cndmask_b32 v{MB}, v{A_}, 0, vcc", f"v_cndmask_b32_e64 v{MB}, v{A_}, 0, vcc"))
    e(f"""v_bfe_u32 v{U}, v1, 2, 2
v_lshlrev_b32 v{U}, 8, v{U}
v_lshrrev_b32 v{A_}, 4, v1
v_lshl_add_u32 v{U}, v{A_}, 4, v{U}""")
    e("s_barrier")
    for j in range(4):
        e(f"ds_read_b128 v[{Q+4*j}:{Q+4*j+3}], v{U} offset:{L_Q+64*j}")
    e("s_waitcnt lgkmcnt(0)")
    e("L_loop:")
    NW = 8 * (D - 1) + 4
    for d in range(D):
        b = BUF + 32 * d
        e(f"s_waitcnt vmcnt({NW})")
        for j in range(4):
            c = "0" if j == 0 else f"v[{S}:{S+3}]"
            e(f"v_mfma_f32_16x16x32_bf16 v[{S}:{S+3}], v[{b+4*j}:{b+4*j+3}], v[{Q+4*j}:{Q+4*j+3}], {c}")
        e(f"s_cmp_gt_i32 s65, 0\ns_cselect_b32 s66, s63, {OOB:#x}\ns_sub_u32 s65, s65, 1\ns_add_u32 s63, s63, 16384")
        issueK(d)
        for r in range(4): bf(T + r, S + r)
        e(f"v_pk_mul_f32 v[{T}:{T+1}], v[{T}:{T+1}], s[68:69]\nv_pk_mul_f32 v[{T+2}:{T+3}], v[{T+2}:{T+3}], s[68:69]")
        for r in range(4): bf(T + r, T + r)
        e(f"v_max3_f32 v{U}, v{T}, v{T+1}, v{T+2}\nv_max_f32 v{U}, v{U}, v{T+3}\nv_cmp_gt_f32 vcc, v{U}, v{VM}")
        e(f"s_cbranch_vccz L_nomax{d}")
        e(f"v_max_f32 v{VM}, v{U}, v{VM}")
        xrow("v_max_f32", VM, U)
        e(f"v_mul_f32 v{U}, s70, v{VM}\nv_sub_f32 v{A_}, v{VML}, v{U}\nv_exp_f32 v{A_}, v{A_}\nv_mov_b32 v{VML}, v{U}")
        for i in range(4):
            e(f"v_pk_mul_f32 v[{O+2*i}:{O+2*i+1}], v[{O+2*i}:{O+2*i+1}], v[{A_}:{A_+1}] op_sel_hi:[1,0]")
        e(f"v_pk_mul_f32 v[{VL}:{VL+1}], v[{VL}:{VL+1}], v[{A_}:{A_+1}] op_sel_hi:[1,0]")
        e(f"L_nomax{d}:")
        for i in range(2):
            e(f"v_pk_fma_f32 v[{T+2*i}:{T+2*i+1}], v[{T+2*i}:{T+2*i+1}], s[70:71], v[{VML}:{VML+1}] op_sel_hi:[1,1,0] neg_lo:[0,0,1] neg_hi:[0,0,1]")
        for r in range(4): e(f"v_exp_f32 v{T+r}, v{T+r}")
        for r in range(4): e(f"v_cvt_pk_bf16_f32 v{S+r}, v{T+r}, v{T+r}")
        for r in range(4):
            e(f"v_and_b32 v{WIN+2+4*r}, v{S+r}, v{MA}\nv_and_b32 v{WIN+3+4*r}, v{S+r}, v{MB}")
        e(f"v_pk_add_f32 v[{VL}:{VL+1}], v[{VL}:{VL+1}], v[{T}:{T+1}]\nv_pk_add_f32 v[{VL}:{VL+1}], v[{VL}:{VL+1}], v[{T+2}:{T+3}]")
        e(f"s_waitcnt vmcnt({NW})")
        for r in range(4):
            vb = b + 16 + 4 * r; w = WIN + 4 * r
            e(f"v_mfma_f32_16x16x32_bf16 v[{O}:{O+3}], v[{vb}:{vb+3}], v[{w+2}:{w+5}], v[{O}:{O+3}]")
            e(f"v_mfma_f32_16x16x32_bf16 v[{O+4}:{O+7}], v[{vb}:{vb+3}], v[{w}:{w+3}], v[{O+4}:{O+7}]")
        issueV(d)
        e("s_sub_u32 s64, s64, 1\ns_cmp_eq_u32 s64, 0\ns_cbranch_scc1 L_sdone")
    e("s_branch L_loop")
    e("L_sdone:")
    e(f"v_add_f32 v{VL}, v{VL}, v{VL+1}")
    xrow("v_add_f32", VL, U)
    e(f"v_mov_b32 v{VML+1}, v{VL}")
    e(f"""s_sub_u32 s60, s60, 4
s_lshl_b32 s67, s60, 11
v_bfe_u32 v{U}, v1, 2, 2
v_lshlrev_b32 v{T}, 9, v{U}
v_lshrrev_b32 v{A_}, 4, v1
v_lshl_add_u32 v{T}, v{A_}, 6, v{T}
v_and_b32 v{A_}, 3, v1
v_lshl_add_u32 v{T}, v{A_}, 4, v{T}
v_add_u32 v{T}, s67, v{T}
s_lshl_b32 s67, s60, 5
v_lshlrev_b32 v{U}, 3, v{U}
v_add_u32 v{U}, s67, v{U}
ds_write_b128 v{T}, v[{O}:{O+3}] offset:{L_O}
ds_write_b128 v{T}, v[{O+4}:{O+7}] offset:{L_O+256}
ds_write_b64 v{U}, v[{VML}:{VML+1}] offset:{L_ML}
s_waitcnt lgkmcnt(0)
s_barrier
s_endpgm""")
    e("L_service:")
    e("""s_mov_b32 s72, 0
s_mul_i32 s73, s61, 15
s_add_u32 s73, s73, s62
s_cmp_lt_u32 s62, 15
s_cbranch_scc0 L_r1
s_mov_b32 s72, 2
s_cmp_lt_u32 s73, 64
s_cbranch_scc1 L_r2
s_mov_b32 s72, 3
s_sub_u32 s73, s73, 64
s_branch L_r2
L_r1:
s_cmp_ge_u32 s62, 30
s_cbranch_scc0 L_r2
s_mov_b32 s72, 4
s_lshl_b32 s73, s61, 1
s_add_u32 s73, s73, s62
s_sub_u32 s73, s73, 30
L_r2:""")
    e("v_lshlrev_b32 v2, 4, v1")
    e("s_waitcnt lgkmcnt(0)")
    srd(40, 28, 0x20000000); srd(44, 26, 256); srd(48, 10, 512 * 4096 * 2)
    srd(52, 12, 4096 * 512 * 2); srd(56, 16, 512 * 1792 * 2); srd(32, 20, 1792 * 512 * 2)
    LD, WF = 64, 128
    def wprefetch(tag):
        e(f"s_cmp_eq_u32 s72, 2\ns_cbranch_scc0 L_pf3{tag}")
        e("""v_lshrrev_b32 v3, 2, v1
v_lshlrev_b32 v3, 10, v3
v_and_b32 v4, 3, v1
v_lshl_add_u32 v3, v4, 4, v3
s_lshr_b32 s74, s73, 2
s_lshl_b32 s74, s74, 18
s_and_b32 s75, s73, 3
s_lshl_b32 s75, s75, 8
s_add_u32 s74, s74, s75
s_lshl_b32 s75, s60, 6
s_add_u32 s74, s74, s75""")
        for i in range(16):
            e(f"buffer_load_dwordx4 v[{LD+4*i}:{LD+4*i+3}], v3, s[52:55], s74 offen nt")
            e("s_add_u32 s74, s74, 16384")
        e(f"s_branch L_pfe{tag}")
        e(f"L_pf3{tag}:")
        e(f"s_cmp_eq_u32 s72, 3\ns_cbranch_scc0 L_pfe{tag}")
        e(f"""v_lshrrev_b32 v3, 2, v1
v_mul_u32_u24 v3, 3584, v3
v_and_b32 v4, 3, v1
v_lshl_add_u32 v3, v4, 4, v3
s_mul_i32 s74, s60, {128*3584}
s_lshl_b32 s75, s73, 6
s_add_u32 s74, s74, s75""")
        for i in range(8):
            e(f"buffer_load_dwordx4 v[{LD+4*i}:{LD+4*i+3}], v3, s[56:59], s74 offen nt")
            e(f"s_add_u32 s74, s74, {16*3584}")
        e("""v_lshrrev_b32 v3, 4, v1
v_lshlrev_b32 v3, 10, v3
v_and_b32 v4, 15, v1
v_lshl_add_u32 v3, v4, 4, v3
s_lshl_b32 s74, s73, 15
s_lshl_b32 s75, s60, 8
s_add_u32 s74, s74, s75""")
        for i in range(8):
            e(f"buffer_load_dwordx4 v[{LD+32+4*i}:{LD+32+4*i+3}], v3, s[32:35], s74 offen nt")
            e("s_add_u32 s74, s74, 4096")
        e(f"L_pfe{tag}:")
    e("s_cmp_eq_u32 s60, 0\ns_cbranch_scc1 L_q")
    if early_w: wprefetch("a")
    e("s_barrier")
    if not early_w: wprefetch("a")
    e("s_branch L_stage")
    e("L_q:")
    e("s_setprio 3")
    e("global_load_dwordx4 v[4:7], v2, s[4:5]")
    e("""s_and_b32 s76, s62, 7
s_lshl_b32 s76, s76, 2
s_lshr_b32 s77, s62, 3
s_or_b32 s76, s76, s77
s_lshl_b32 s77, s61, 5
s_add_u32 s76, s76, s77
s_lshl_b32 s76, s76, 5
v_lshrrev_b32 v3, 1, v1
v_lshlrev_b32 v8, 13, v3
v_and_b32 v9, 1, v1
v_lshl_add_u32 v8, v9, 4, v8
s_mov_b32 s74, s76""")
    for i in range(16):
        e(f"buffer_load_dwordx4 v[{LD+4*i}:{LD+4*i+3}], v8, s[48:51], s74 offen" + (" nt" if wq_nt else ""))
        e("s_add_u32 s74, s74, 0x40000")
    for i in range(4): e(f"v_mov_b32 v{12+i}, -1")
    e(f"""s_lshl_b32 s74, s2, 11
s_add_u32 s74, s74, {WS_H1:#x}
buffer_store_dwordx4 v[12:15], v2, s[40:43], s74 offen{hs}
buffer_store_dwordx4 v[12:15], v2, s[40:43], s74 offen offset:1024{hs}
s_lshl_b32 s74, s73, 9
s_add_u32 s74, s74, {WS_H2:#x}
s_cmp_eq_u32 s72, 2
s_cselect_b32 s74, s74, {OOB:#x}
v_lshlrev_b32 v10, 3, v1
buffer_store_dwordx2 v[12:13], v10, s[40:43], s74 offen{hs}
s_lshl_b32 s74, s73, 11
s_add_u32 s74, s74, {WS_H3:#x}
s_cmp_eq_u32 s72, 3
s_cselect_b32 s74, s74, {OOB:#x}
buffer_store_dwordx4 v[12:15], v2, s[40:43], s74 offen{hs}
buffer_store_dwordx4 v[12:15], v2, s[40:43], s74 offen offset:1024{hs}
s_lshl_b32 s74, s61, 10
s_and_b32 s75, s62, 3
s_lshl_b32 s75, s75, 6
s_add_u32 s74, s74, s75
s_lshr_b32 s75, s62, 2
s_lshl_b32 s75, s75, 3
s_add_u32 s74, s74, s75
s_add_u32 s74, s74, {WS_HD:#x}
v_lshlrev_b32 v10, 8, v1
s_mov_b64 exec, 15
buffer_store_dwordx2 v[12:13], v10, s[40:43], s74 offen{hs}
s_mov_b64 exec, -1""")
    e("s_waitcnt vmcnt(22)")
    unpack8(16, 4)
    layernorm(16, 24)
    for i in range(8): bf(16 + i, 16 + i)
    e(f"v_lshlrev_b32 v10, 5, v1\nds_write_b128 v10, v[16:19] offset:{L_XN}\nds_write_b128 v10, v[20:23] offset:{L_XN+16}")
    e("v_lshlrev_b32 v3, 2, v3\ns_waitcnt lgkmcnt(0)")
    XR = 32
    for i in range(16):
        e(f"ds_read_b32 v{XR+2*i}, v3 offset:{L_XN+128*i}")
    for i in range(8): e(f"v_mov_b32 v{16+i}, 0")
    e("s_waitcnt lgkmcnt(0)")
    for i in range(16):
        e(f"s_waitcnt vmcnt({21-i})")
        unpack8(24, LD + 4 * i)
        for c in range(4):
            e(f"v_pk_fma_f32 v[{16+2*c}:{17+2*c}], v[{24+2*c}:{25+2*c}], v[{XR+2*i}:{XR+2*i+1}], v[{16+2*c}:{17+2*c}] op_sel_hi:[1,0,1]")
    for (x, y) in ((16, 18), (17, 19), (20, 22), (21, 23)):
        e(f"v_permlane16_swap_b32 v{x}, v{y}")
    for (x, y) in ((16, 18), (17, 19), (20, 22), (21, 23)):
        e(f"v_add_f32 v{x}, v{x}, v{y}")
    e("v_permlane32_swap_b32 v16, v20\nv_permlane32_swap_b32 v17, v21\nv_add_f32 v16, v16, v20\nv_add_f32 v17, v17, v21")
    for r in (8, 4, 2):
        e(f"v_add_f32_dpp v16, v16, v16 row_ror:{r} row_mask:0xf bank_mask:0xf")
        e(f"v_add_f32_dpp v17, v17, v17 row_ror:{r} row_mask:0xf bank_mask:0xf")
    e(f"""v_cvt_pk_bf16_f32 v16, v16, v17
v_lshrrev_b32 v10, 4, v1
v_lshlrev_b32 v10, 2, v10
v_lshl_add_u32 v10, v9, 4, v10
s_mov_b32 exec_lo, 0x00030003
s_mov_b32 exec_hi, 0x00030003
buffer_store_dword v16, v10, s[40:43], s76 offen{hs}
s_mov_b64 exec, 1
v_mov_b32 v11, 1
v_mov_b32 v10, s2
s_waitcnt vmcnt(0)
buffer_store_byte v11, v10, s[44:47], 0 offen{hs}
s_mov_b64 exec, -1
v_and_b32 v10, 7, v1
v_lshlrev_b32 v10, 2, v10
s_lshl_b32 s74, s61, 5
v_mov_b32 v12, 0x01010101""")
    poll("L_pq", lambda: e(f"buffer_load_dword v11, v10, s[44:47], s74 offen{hs}"), lambda: e("v_cmp_ne_u32 vcc, v11, v12"))
    e(f"""s_lshl_b32 s74, s61, 10
buffer_load_dwordx4 v[4:7], v2, s[40:43], s74 offen{hs}
s_waitcnt vmcnt(0)
ds_write_b128 v2, v[4:7] offset:{L_Q}
s_waitcnt lgkmcnt(0)
s_barrier
s_setprio 0""")
    stamp(1)
    wprefetch("b")
    e("L_stage:")
    e(f"s_lshl_b32 s74, s60, 14\ns_add_u32 s74, s74, {L_STG}\nv_add_u32 v3, s74, v2")
    e("v_lshrrev_b32 v5, 4, v1\nv_and_b32 v6, 15, v1")
    e("s_cmp_eq_u32 s72, 2\ns_cbranch_scc1 L_st2\ns_cmp_eq_u32 s72, 3\ns_cbranch_scc1 L_st3")
    e("s_cmp_eq_u32 s72, 4\ns_cbranch_scc0 L_ste")
    e("""v_and_b32 v7, 7, v1
v_lshlrev_b32 v7, 3, v7
s_lshl_b32 s74, s73, 6
v_add_u32 v7, s74, v7
global_load_dwordx2 v[40:41], v7, s[4:5]
global_load_dwordx2 v[42:43], v7, s[22:23]
s_branch L_ste""")
    def stage_write():
        for i in range(16):
            e(f"s_waitcnt vmcnt({15-i})\nds_write_b128 v3, v[{LD+4*i}:{LD+4*i+3}] offset:{1024*i}")
        e("s_waitcnt lgkmcnt(0)")
    def frag(dst, addr, offs):
        for q in range(8):
            e(f"ds_read_u16 v{LD+q}, v{addr} offset:{offs[q]}")
        e("s_waitcnt lgkmcnt(0)")
        for q in range(4):
            e(f"v_lshl_or_b32 v{dst+q}, v{LD+2*q+1}, 16, v{LD+2*q}")
    e("L_st2:")
    stage_write()
    e("""v_lshrrev_b32 v7, 1, v5
v_lshlrev_b32 v7, 11, v7
v_and_b32 v8, 1, v5
v_lshl_add_u32 v7, v8, 7, v7
v_lshl_add_u32 v7, v6, 1, v7
v_add_u32 v7, s74, v7""")
    for s in range(8):
        for t in range(2):
            offs = [((s >> 2) * 128 + 64 * (s & 1) + 8 * (q & 3) + 4 * ((s & 3) >> 1) + (q >> 2)) * 64 + t * 32 for q in range(8)]
            frag(WF + (s * 2 + t) * 4, 7, offs)
    e("s_branch L_ste")
    e("L_st3:")
    stage_write()
    e("""v_lshlrev_b32 v7, 2, v0
global_load_dword v40, v7, s[4:5]
v_and_b32 v7, 31, v1
v_lshlrev_b32 v7, 1, v7
s_lshl_b32 s75, s73, 6
v_add_u32 v7, s75, v7
global_load_ushort v41, v7, s[18:19]
v_lshlrev_b32 v7, 9, v5
v_lshl_add_u32 v7, v6, 1, v7
v_add_u32 v7, s74, v7
v_lshlrev_b32 v8, 11, v5
v_lshl_add_u32 v8, v6, 1, v8
v_add_u32 v8, s74, v8""")
    for s in range(4):
        for t in range(2):
            frag(WF + (s * 2 + t) * 4, 7, [(32 * s + q) * 64 + t * 32 for q in range(8)])
    for t in range(8):
        frag(WF + 32 + t * 4, 8, [8192 + q * 256 + t * 32 for q in range(8)])
    e("L_ste:")
    e("v_lshlrev_b32 v10, 2, v1\nv_mov_b32 v12, 0x01010101")
    poll("L_pa", lambda: e(f"buffer_load_dword v11, v10, s[44:47], 0 offen{hs}"), lambda: e("v_cmp_ne_u32 vcc, v11, v12"))
    e(f"""s_lshl_b32 s74, s60, 3
v_mov_b32 v7, s74
s_lshl_b32 s74, s60, 9
v_lshlrev_b32 v9, 3, v1
v_add_u32 v8, s74, v9
s_lshl_b32 s75, s2, 11
s_add_u32 s75, s75, s74
s_add_u32 s75, s75, {WS_H1:#x}
s_lshl_b32 s76, s61, 2
s_add_u32 s76, s76, s60
s_lshl_b32 s76, s76, 8
s_and_b32 s77, s62, 3
s_lshl_b32 s77, s77, 6
s_add_u32 s76, s76, s77
s_lshr_b32 s77, s62, 2
s_lshl_b32 s77, s77, 3
s_add_u32 s76, s76, s77
s_add_u32 s76, s76, {WS_HD:#x}
s_barrier""")
    stamp(2)
    for s in range(4):
        e(f"ds_read_b64 v[{16+2*s}:{17+2*s}], v7 offset:{L_ML+32*s}")
    for s in range(4):
        e(f"ds_read_b64 v[{24+2*s}:{25+2*s}], v8 offset:{L_O+2048*s}")
    e("s_waitcnt lgkmcnt(4)")
    e("v_max3_f32 v32, v16, v18, v20\nv_max_f32 v32, v32, v22")
    for s in range(4): e(f"v_sub_f32 v{16+2*s}, v{16+2*s}, v32")
    for s in range(4): e(f"v_exp_f32 v{16+2*s}, v{16+2*s}")
    e("v_mul_f32 v33, v16, v17")
    for s in range(1, 4): e(f"v_fmac_f32 v33, v{16+2*s}, v{17+2*s}")
    e("s_waitcnt lgkmcnt(0)")
    e("v_pk_mul_f32 v[34:35], v[24:25], v[16:17] op_sel_hi:[1,0]")
    for s in range(1, 4):
        e(f"v_pk_fma_f32 v[34:35], v[{24+2*s}:{25+2*s}], v[{16+2*s}:{17+2*s}], v[34:35] op_sel_hi:[1,0,1]")
    e(f"""buffer_store_dwordx2 v[34:35], v9, s[40:43], s75 offen{hs}
s_mov_b64 exec, 1
buffer_store_dwordx2 v[32:33], off, s[40:43], s76{hs}
s_mov_b64 exec, -1""")
    stamp(3)
    e("s_cmp_eq_u32 s72, 2\ns_cbranch_scc1 L_s2\ns_cmp_eq_u32 s72, 3\ns_cbranch_scc1 L_s3\ns_cmp_eq_u32 s72, 4\ns_cbranch_scc1 L_s4")
    e("s_branch L_fin")
    e("L_s2:")
    e(f"""s_lshr_b32 s74, s73, 2
s_lshl_b32 s75, s74, 1
s_lshr_b32 s76, s60, 1
s_add_u32 s75, s75, s76
s_lshr_b32 s76, s75, 2
s_lshl_b32 s76, s76, 16
s_and_b32 s77, s75, 3
s_lshl_b32 s77, s77, 9
s_add_u32 s76, s76, s77
s_and_b32 s77, s60, 1
s_lshl_b32 s77, s77, 8
s_add_u32 s76, s76, s77
s_add_u32 s64, s76, {WS_H1:#x}
s_lshl_b32 s75, s75, 8
s_add_u32 s75, s75, {WS_HD:#x}
v_lshlrev_b32 v7, 11, v5
v_lshl_add_u32 v7, v6, 4, v7
v_lshlrev_b32 v8, 6, v5""")
    for k in range(1, 8): e(f"s_add_u32 s{64+k}, s64, {8192*k}")
    def s2_issue():
        for k in range(4):
            e(f"buffer_load_dwordx4 v[{16+4*k}:{19+4*k}], v8, s[40:43], s75 offen offset:{16*k}{hs}")
        for k in range(8):
            e(f"buffer_load_dwordx4 v[{64+4*k}:{67+4*k}], v7, s[40:43], s{64+k} offen{hs}")
    poll("L_p2", s2_issue, lambda: anysent(list(range(16, 32)) + list(range(64, 96)), 10))
    stamp(4)
    e("v_max3_f32 v32, v16, v18, v20\nv_max3_f32 v32, v32, v22, v24\nv_max3_f32 v32, v32, v26, v28\nv_max_f32 v32, v32, v30")
    xrow("v_max_f32", 32, 33)
    for k in range(8): e(f"v_sub_f32 v{16+2*k}, v{16+2*k}, v32")
    for k in range(8): e(f"v_exp_f32 v{16+2*k}, v{16+2*k}")
    e("v_mul_f32 v33, v16, v17")
    for k in range(1, 8): e(f"v_fmac_f32 v33, v{16+2*k}, v{17+2*k}")
    e("v_pk_mul_f32 v[36:37], v[64:65], v[16:17] op_sel_hi:[1,0]\nv_pk_mul_f32 v[38:39], v[66:67], v[16:17] op_sel_hi:[1,0]")
    xrow("v_add_f32", 33, 34)
    for k in range(1, 8):
        e(f"v_pk_fma_f32 v[36:37], v[{64+4*k}:{65+4*k}], v[{16+2*k}:{17+2*k}], v[36:37] op_sel_hi:[1,0,1]")
        e(f"v_pk_fma_f32 v[38:39], v[{66+4*k}:{67+4*k}], v[{16+2*k}:{17+2*k}], v[38:39] op_sel_hi:[1,0,1]")
    e(f"""v_rcp_f32 v33, v33
s_lshl_b32 s76, s60, 7
v_lshlrev_b32 v9, 3, v6
v_lshl_add_u32 v9, v5, 1, v9
v_add_u32 v9, s76, v9
v_permlane16_swap_b32 v36, v37
v_permlane16_swap_b32 v38, v39
v_add_f32 v36, v36, v37
v_add_f32 v38, v38, v39
v_permlane32_swap_b32 v36, v38
v_add_f32 v36, v36, v38
v_mul_f32 v36, v36, v33
v_cvt_pk_bf16_f32 v36, v36, v36
ds_write_b16 v9, v36 offset:{L_OB}
v_lshlrev_b32 v9, 4, v5
s_waitcnt lgkmcnt(0)
s_barrier""")
    for s in range(8):
        e(f"ds_read_b128 v[{64+4*s}:{67+4*s}], v9 offset:{L_OB+64*s}")
    e(f"""s_lshl_b32 s76, s73, 9
s_lshl_b32 s77, s60, 7
s_add_u32 s76, s76, s77
s_add_u32 s76, s76, {WS_H2:#x}
v_lshlrev_b32 v9, 2, v1
v_cmp_lt_u32 vcc, 15, v1""")
    for s in range(8):
        e(f"s_waitcnt lgkmcnt({7-s})")
        for t in range(2):
            c = "0" if s == 0 else f"v[{16+4*t}:{19+4*t}]"
            w = WF + (2 * s + t) * 4
            e(f"v_mfma_f32_16x16x32_bf16 v[{16+4*t}:{19+4*t}], v[{64+4*s}:{67+4*s}], v[{w}:{w+3}], {c}")
    e(f"""v_cndmask_b32 v16, v16, v20, vcc
s_mov_b32 exec_hi, 0
buffer_store_dword v16, v9, s[40:43], s76 offen{hs}
s_mov_b64 exec, -1
s_branch L_fin""")
    e("L_s3:")
    e("v_lshlrev_b32 v7, 3, v0")
    for k in range(8): e(f"s_mov_b32 s{64+k}, {WS_H2+4096*k:#x}")
    def s3_issue():
        for i in range(16):
            e(f"buffer_load_dwordx2 v[{64+2*i}:{65+2*i}], v7, s[40:43], s{64+(i>>1)} offen offset:{2048*(i&1)}{hs}")
    poll("L_p3", s3_issue, lambda: anysent(range(64, 96), 10))
    stamp(4)
    for st in (8, 4, 2, 1):
        for i in range(st):
            e(f"v_pk_add_f32 v[{64+2*i}:{65+2*i}], v[{64+2*i}:{65+2*i}], v[{64+2*(i+st)}:{65+2*(i+st)}]")
    e(f"""v_lshlrev_b32 v42, 16, v40
v_and_b32 v43, 0xffff0000, v40""")
    bf(64, 64); bf(65, 65)
    e(f"""v_pk_add_f32 v[64:65], v[64:65], v[42:43]
v_lshlrev_b32 v7, 2, v0
v_cvt_pk_bf16_f32 v64, v64, v65
ds_write_b32 v7, v64 offset:{L_H}
s_waitcnt lgkmcnt(0)
s_barrier
ds_read_b128 v[44:47], v2 offset:{L_H}
s_lshl_b32 s74, s60, 10
v_add_u32 v7, s74, v2
s_lshl_b32 s75, s60, 8
s_add_u32 s75, s75, s74
v_lshlrev_b32 v8, 4, v5
v_add_u32 v8, s75, v8
s_waitcnt lgkmcnt(0)""")
    unpack8(16, 44)
    layernorm(16, 24)
    for i in range(8): bf(16 + i, 16 + i)
    layernorm(16, 24)
    for i in range(4): e(f"v_cvt_pk_bf16_f32 v{44+i}, v{16+2*i}, v{17+2*i}")
    e(f"ds_write_b128 v7, v[44:47] offset:{L_Y}\ns_waitcnt lgkmcnt(0)")
    for s in range(4):
        e(f"ds_read_b128 v[{64+4*s}:{67+4*s}], v8 offset:{L_Y+64*s}")
    e(f"""s_lshl_b32 s74, s60, 7
v_lshlrev_b32 v9, 2, v1
v_add_u32 v9, s74, v9
v_and_b32 v7, 31, v1
v_lshlrev_b32 v8, 2, v7
s_lshl_b32 s74, s60, 6
v_lshl_add_u32 v7, v7, 1, s74
v_lshl_add_u32 v11, v5, 4, s74
v_lshlrev_b32 v41, 16, v41
v_cmp_lt_u32 vcc, 15, v1""")
    for s in range(4):
        e(f"s_waitcnt lgkmcnt({3-s})")
        for t in range(2):
            c = "0" if s == 0 else f"v[{16+4*t}:{19+4*t}]"
            w = WF + (2 * s + t) * 4
            e(f"v_mfma_f32_16x16x32_bf16 v[{16+4*t}:{19+4*t}], v[{64+4*s}:{67+4*s}], v[{w}:{w+3}], {c}")
    e(f"""v_cndmask_b32 v16, v16, v20, vcc
s_mov_b32 exec_hi, 0
ds_write_b32 v9, v16 offset:{L_T}
s_mov_b64 exec, -1
s_waitcnt lgkmcnt(0)
s_barrier""")
    for s in range(4): e(f"ds_read_b32 v{24+s}, v8 offset:{L_T+128*s}")
    C1 = -2.0 * 0.7978845608028654 * LOG2E
    e(f"""s_waitcnt lgkmcnt(0)
v_add_f32 v24, v24, v25
v_add_f32 v26, v26, v27
v_add_f32 v24, v24, v26""")
    bf(24, 24)
    e("v_add_f32 v24, v24, v41")
    bf(24, 24)
    e(f"""v_mul_f32 v25, v24, v24
v_mul_f32 v25, {f2u(0.044715):#x}, v25
v_fma_f32 v25, v25, v24, v24
v_mul_f32 v25, {f2u(C1):#x}, v25
v_exp_f32 v25, v25
v_add_f32 v25, 1.0, v25
v_rcp_f32 v25, v25
v_mul_f32 v24, v24, v25
v_cvt_pk_bf16_f32 v24, v24, v24
ds_write_b16 v7, v24 offset:{L_HH}
s_waitcnt lgkmcnt(0)
ds_read_b128 v[28:31], v11 offset:{L_HH}
s_lshl_b32 s74, s73, 11
s_lshl_b32 s75, s60, 9
s_add_u32 s74, s74, s75
s_add_u32 s74, s74, {WS_H3:#x}
v_lshlrev_b32 v9, 2, v1
v_cmp_eq_u32 s[64:65], 1, v5
v_cmp_eq_u32 s[66:67], 2, v5
v_cmp_eq_u32 s[68:69], 3, v5
s_waitcnt lgkmcnt(0)""")
    for t in range(8):
        w = WF + 32 + 4 * t
        e(f"v_mfma_f32_16x16x32_bf16 v[{64+4*t}:{67+4*t}], v[28:31], v[{w}:{w+3}], 0")
    for hf in range(2):
        b = 64 + 16 * hf
        e(f"v_cndmask_b32_e64 v{b}, v{b}, v{b+4}, s[64:65]\nv_cndmask_b32_e64 v{b}, v{b}, v{b+8}, s[66:67]\nv_cndmask_b32_e64 v{b}, v{b}, v{b+12}, s[68:69]")
        e(f"buffer_store_dword v{b}, v9, s[40:43], s74 offen offset:{256*hf}{hs}")
    e("s_branch L_fin")
    e("L_s4:")
    e("s_cmp_eq_u32 s60, 0\ns_cbranch_scc0 L_fin")
    e(f"""v_lshrrev_b32 v8, 3, v1
v_lshlrev_b32 v8, 11, v8
v_and_b32 v9, 7, v1
v_lshl_add_u32 v8, v9, 4, v8
s_lshl_b32 s74, s73, 6
v_lshl_add_u32 v7, v9, 3, s74
s_lshl_b32 s74, s73, 7
s_add_u32 s75, s74, {WS_H2:#x}
s_add_u32 s76, s74, {WS_H2+16384:#x}""")
    for k in range(7): e(f"s_add_u32 s{64+k}, s74, {WS_H3+16384*k:#x}")
    def red8(b):
        for i in range(4):
            e(f"v_add_f32_dpp v{b+i}, v{b+i}, v{b+i} row_ror:8 row_mask:0xf bank_mask:0xf")
        for i in range(4): e(f"v_mov_b32 v{b+4+i}, v{b+i}")
        for i in range(4): e(f"v_permlane16_swap_b32 v{b+4+i}, v{b+i}")
        for i in range(4): e(f"v_add_f32 v{b+i}, v{b+i}, v{b+4+i}")
        for i in range(4): e(f"v_mov_b32 v{b+4+i}, v{b+i}")
        for i in range(4): e(f"v_permlane32_swap_b32 v{b+4+i}, v{b+i}")
        for i in range(4): e(f"v_add_f32 v{b+i}, v{b+i}, v{b+4+i}")
    def s4a():
        e(f"buffer_load_dwordx4 v[16:19], v8, s[40:43], s75 offen{hs}\nbuffer_load_dwordx4 v[20:23], v8, s[40:43], s76 offen{hs}")
    poll("L_p4", s4a, lambda: anysent(range(16, 24), 10))
    e("v_pk_add_f32 v[16:17], v[16:17], v[20:21]\nv_pk_add_f32 v[18:19], v[18:19], v[22:23]")
    red8(16)
    for i in range(4): bf(16 + i, 16 + i)
    for i in range(2):
        e(f"v_lshlrev_b32 v{24+2*i}, 16, v{40+i}\nv_and_b32 v{25+2*i}, 0xffff0000, v{40+i}")
        e(f"v_lshlrev_b32 v{28+2*i}, 16, v{42+i}\nv_and_b32 v{29+2*i}, 0xffff0000, v{42+i}")
    e("v_pk_add_f32 v[16:17], v[16:17], v[24:25]\nv_pk_add_f32 v[18:19], v[18:19], v[26:27]")
    for i in range(4): bf(16 + i, 16 + i)
    def s4b():
        for k in range(7):
            e(f"buffer_load_dwordx4 v[{64+4*k}:{67+4*k}], v8, s[40:43], s{64+k} offen{hs}")
    poll("L_p5", s4b, lambda: anysent(range(64, 92), 10))
    stamp(4)
    for (x, y) in ((0, 4), (1, 5), (2, 6), (0, 2), (1, 3), (0, 1)):
        for h in range(2):
            e(f"v_pk_add_f32 v[{64+4*x+2*h}:{65+4*x+2*h}], v[{64+4*x+2*h}:{65+4*x+2*h}], v[{64+4*y+2*h}:{65+4*y+2*h}]")
    red8(64)
    for i in range(4): bf(64 + i, 64 + i)
    e("v_pk_add_f32 v[64:65], v[64:65], v[28:29]\nv_pk_add_f32 v[66:67], v[66:67], v[30:31]")
    for i in range(4): bf(64 + i, 64 + i)
    e("v_pk_add_f32 v[64:65], v[64:65], v[16:17]\nv_pk_add_f32 v[66:67], v[66:67], v[18:19]")
    e("""v_cvt_pk_bf16_f32 v64, v64, v65
v_cvt_pk_bf16_f32 v65, v66, v67
s_mov_b64 exec, 0xff
global_store_dwordx2 v7, v[64:65], s[24:25]
s_mov_b64 exec, -1""")
    e("L_fin:")
    if stamps:
        e("s_waitcnt vmcnt(0)")
        stamp(5)
        e("s_cmp_eq_u32 s60, 0\ns_cbranch_scc0 L_end")
        e("s_waitcnt lgkmcnt(0)")
        for i in range(12): e(f"v_mov_b32 v{16+i}, s{80+i}")
        e("v_mov_b32 v28, s72\nv_mov_b32 v29, 0\nv_mov_b32 v30, s80\nv_mov_b32 v31, s81")
        e("s_lshl_b32 s74, s2, 6\ns_add_u32 s74, s74, 0x10000000\ns_mov_b64 exec, 1")
        for i in range(4):
            e(f"buffer_store_dwordx4 v[{16+4*i}:{19+4*i}], off, s[40:43], s74 offset:{16*i}")
    e("L_end:")
    e("s_endpgm")
    nv = max(a.maxv + 1, 129)
    nv = (nv + 7) // 8 * 8
    a.raw('.section .rodata,"a"\n.p2align 6')
    a.raw(f""".amdhsa_kernel {KN}
  .amdhsa_next_free_vgpr {nv}
  .amdhsa_next_free_sgpr 96
  .amdhsa_accum_offset {nv}
  .amdhsa_group_segment_fixed_size 0
  .amdhsa_kernarg_size 104
  .amdhsa_user_sgpr_count 2
  .amdhsa_user_sgpr_kernarg_segment_ptr 1
  .amdhsa_system_sgpr_workgroup_id_x 1
  .amdhsa_float_denorm_mode_32 3
.end_amdhsa_kernel""")
    return a.text()
if __name__ == "__main__":
    open("k_dbg.s", "w").write(gen(stamps=True))
    open("k_rel.s", "w").write(gen())
```
